```python
import torch

def _softmax(x, axis=-1):
    return torch.softmax(x, dim=axis)
def _gelu(x):
    return torch.nn.functional.gelu(x, approximate="tanh")
def _silu(x):
    return torch.nn.functional.silu(x)
def _sigmoid(x):
    return torch.sigmoid(x)
def _layernorm(x, axis=-1, eps=1e-5):
    m = x.mean(dim=axis, keepdim=True)
    v = x.var(dim=axis, keepdim=True, unbiased=False)
    return (x - m) / torch.sqrt(v + eps)
def _scatter_add(tgt, idx, src, axis=0):
    return tgt.clone().index_add_(axis, idx, src)
def _segment_sum(src, seg, n):
    out = torch.zeros((n,) + src.shape[1:], dtype=src.dtype)
    return out.index_add_(0, seg, src)
def _pad(x, pw):
    flat = tuple(v for pair in reversed(pw) for v in pair)
    return torch.nn.functional.pad(x, flat)

kernel_name = 'gated_mix__ssm_conv_s4__swiglu_ffn__prompt'

def setup_inputs():

    _w = (lambda a: (lambda t: t.to(torch.bfloat16) if t.is_floating_point() else t)(torch.as_tensor(a)))
    def _A_setup():
        B, L, D, N = 1, 2048, 1024, 128
        A_re = -(lambda _x: torch.exp(torch.as_tensor(_x)))((lambda *s: torch.randn(*s, dtype=torch.bfloat16) * 6.4)(D, N))
        A_im = torch.pi * (lambda *s: torch.randn(*s, dtype=torch.bfloat16) * 0.05)(D, N)
        B_re = (lambda *s: torch.randn(*s, dtype=torch.bfloat16) * 0.1)(D, N)
        B_im = (lambda *s: torch.randn(*s, dtype=torch.bfloat16) * 0.1)(D, N)
        C_re = (lambda *s: torch.randn(*s, dtype=torch.bfloat16) * 0.1)(D, N)
        C_im = (lambda *s: torch.randn(*s, dtype=torch.bfloat16) * 0.1)(D, N)
        log_dt = (lambda *s: torch.randn(*s, dtype=torch.bfloat16) * 0.05)(D) * 0.5 - 4.0
        Dskip = (lambda *s: torch.randn(*s, dtype=torch.bfloat16) * 0.05)(D)
        return {
            "u": _w((lambda *s: torch.randn(*s, dtype=torch.bfloat16) * 0.05)(B, L, D)),
            "A_re": _w(A_re),
            "A_im": _w(A_im),
            "B_re": _w(B_re),
            "B_im": _w(B_im),
            "C_re": _w(C_re),
            "C_im": _w(C_im),
            "log_dt": _w(log_dt),
            "Dskip": _w(Dskip),
        }
    _A_in = _A_setup()

    def _B_setup():
        B, S, D, F = 1, 2048, 1024, 3584
        return {
            "x": _w((lambda *s: torch.randn(*s, dtype=torch.bfloat16) * 0.05)(B, S, D)),
            "w_gate": _w((lambda *s: torch.randn(*s, dtype=torch.bfloat16) * 0.05)(D, F)),
            "w_up": _w((lambda *s: torch.randn(*s, dtype=torch.bfloat16) * 0.05)(D, F)),
            "w_down": _w((lambda *s: torch.randn(*s, dtype=torch.bfloat16) * 0.05)(F, D)),
        }
    _B_in = _B_setup()

    return {
        "A_u": _A_in["u"],
        "A_A_re": _A_in["A_re"],
        "A_A_im": _A_in["A_im"],
        "A_B_re": _A_in["B_re"],
        "A_B_im": _A_in["B_im"],
        "A_C_re": _A_in["C_re"],
        "A_C_im": _A_in["C_im"],
        "A_log_dt": _A_in["log_dt"],
        "A_Dskip": _A_in["Dskip"],
        "B_x": _B_in["x"],
        "B_w_gate": _B_in["w_gate"],
        "B_w_up": _B_in["w_up"],
        "B_w_down": _B_in["w_down"],
        "gate_w": _w((lambda *s: torch.randn(*s, dtype=torch.bfloat16) * 0.05)(1024) * 16.0),
    }

def reference(A_u, A_A_re, A_A_im, A_B_re, A_B_im, A_C_re, A_C_im, A_log_dt, A_Dskip, B_x, B_w_gate, B_w_up, B_w_down, gate_w):
    def _A_ref(u, A_re, A_im, B_re, B_im, C_re, C_im, log_dt, Dskip):
        Bsz, L, D = u.shape
        dt = torch.exp(log_dt)[:, None]
        A = A_re + 1j * A_im
        Bc = B_re + 1j * B_im
        Cc = C_re + 1j * C_im
        logdA = dt * A
        dB = dt * Bc
        l = (lambda x, dt: x.to(dt))(torch.arange(L), A_re.dtype)
        P = torch.exp(logdA[:, :, None] * l[None, None, :])
        K = torch.einsum("dn,dnl,dn->dl", Cc, P, dB).real
        L2 = 2 * L
        Kp = _pad(K, ((0, 0), (0, L)))
        up = (lambda x, *d: x.permute(*d))(u, 0, 2, 1)
        up = _pad(up, ((0, 0), (0, 0), (0, L)))
        Kf = (lambda x, axes=(-2,-1): torch.fft.rfft2(x.float(), dim=axes))(Kp[:, None, :], axes=(-2, -1))
        Uf = (lambda x, axes=(-2,-1): torch.fft.rfft2(x.float(), dim=axes))(up[:, :, None, :], axes=(-2, -1))
        Yf = Uf * Kf[None, :, :, :]
        y = (lambda x, s, axes=(-2,-1): torch.fft.irfft2(x, s=s, dim=axes).to(torch.bfloat16))(Yf, (1, L2), axes=(-2, -1))[:, :, 0, :L]
        y = (lambda x, *d: x.permute(*d))(y, 0, 2, 1) + u * Dskip[None, None, :]
        return y

    def _B_ref(x, w_gate, w_up, w_down):
        g = _silu(x @ w_gate)
        u = x @ w_up
        return (g * u) @ w_down

    x = A_u
    g = _sigmoid((x * gate_w).sum(-1, keepdims=True))
    a = _A_ref(x, A_A_re, A_A_im, A_B_re, A_B_im, A_C_re, A_C_im, A_log_dt, A_Dskip)
    b = _B_ref(x, B_w_gate, B_w_up, B_w_down)
    return g * a + (1 - g) * b
```

```python
class Asm:
    def __init__(self):
        self.lines = []
    def __call__(self, s):
        for l in s.split("\n"):
            l = l.strip()
            if l:
                self.lines.append("    " + l if not l.endswith(":") else l)
    def label(self, s):
        self.lines.append(s + ":")
    def comment(self, s):
        self.lines.append("    ; " + s)
    def text(self):
        return "\n".join(self.lines) + "\n"

def srd(a, d, base, nbytes):
    a(f"s_mov_b32 s{d}, s{base}")
    a(f"s_and_b32 s{d+1}, s{base+1}, 0xffff")
    a(f"s_mov_b32 s{d+2}, {nbytes:#x}")
    a(f"s_mov_b32 s{d+3}, 0x00020000")

def kernel_begin(a, name):
    a.lines.append(f".globl {name}")
    a.lines.append(".p2align 8")
    a.lines.append(f".type {name},@function")
    a.lines.append(f"{name}:")

def kernel_desc(name, vgpr, sgpr, accum):
    return f""".p2align 6
.amdhsa_kernel {name}
  .amdhsa_next_free_vgpr {vgpr}
  .amdhsa_next_free_sgpr {sgpr}
  .amdhsa_accum_offset {accum}
  .amdhsa_group_segment_fixed_size 0
  .amdhsa_kernarg_size 136
  .amdhsa_user_sgpr_count 2
  .amdhsa_user_sgpr_kernarg_segment_ptr 1
  .amdhsa_system_sgpr_workgroup_id_x 1
  .amdhsa_float_denorm_mode_32 3
  .amdhsa_float_denorm_mode_16_64 3
.end_amdhsa_kernel
"""

def interleave(a, mains, fill, start=0, per=2):
    fill = list(fill)
    for i, m in enumerate(mains):
        a(m)
        if i >= start:
            for _ in range(per):
                if fill:
                    a(fill.pop(0))
    return fill

def placed(a, mains, slots):
    for i, m in enumerate(mains):
        fl = slots.get(i, [])
        if isinstance(m, list):
            n = len(m)
            for k, mm in enumerate(m):
                a(mm)
                for s in fl[k::n] if len(fl) > 1 and not any('s_cselect' in q or 's_cmp' in q for q in fl) else (fl if k == n - 1 else []):
                    a(s)
        else:
            a(m)
            for s in fl:
                a(s)

HEADER = """; Kernarg layout: 17 pointers (see .s.ref). Generated by work/gen.py (hand-written generator).
"""
KA = dict(u=0, A_re=8, A_im=16, B_re=24, B_im=32, C_re=40, C_im=48, log_dt=56, Dskip=64, Bx=72,
          wg=80, wu=88, wd=96, gate_w=104, out=112, dbg=120, ws=128)
```

```python
from asmlib import *

H_OFF = 0
H_BYTES = 64 * 224 * 1024
STAMP_OFF = 0x8000000

WSLOT = 28672
XBASE = 3 * WSLOT
XSLOT = 32768
G1_LDS = XBASE + 2 * XSLOT

def acc(m, c):
    return 32 + (m * 2 + c) * 16
def wfrag(b, m):
    return b * 28 + m * 4
def xfrag(b, q, c):
    return 64 + b * 32 + (q * 2 + c) * 4

def stamp(a, k):
    a(f"s_memrealtime s[{64+4*k}:{65+4*k}]")
    a(f"s_memtime s[{66+4*k}:{67+4*k}]")

def stamp_store(a, srd_ws, sets, nwg_off=0):
    a("s_waitcnt vmcnt(0) lgkmcnt(0)")
    for (k0, k1, area) in sets:
        a(f"s_lshl_b32 s80, s2, 5")
        a(f"s_add_u32 s80, s80, {STAMP_OFF + area * 0x10000:#x}")
        a(f"v_mov_b32 v0, s{64+4*k0}"); a(f"v_mov_b32 v1, s{65+4*k0}")
        a(f"v_mov_b32 v2, s{64+4*k1}"); a(f"v_mov_b32 v3, s{65+4*k1}")
        a(f"v_mov_b32 v4, s{66+4*k0}"); a(f"v_mov_b32 v5, s{67+4*k0}")
        a(f"v_mov_b32 v6, s{66+4*k1}"); a(f"v_mov_b32 v7, s{67+4*k1}")
        a("v_mov_b32 v8, 0")
        a(f"buffer_store_dwordx4 v[0:3], v8, s[{srd_ws}:{srd_ws+3}], s80 offen")
        a(f"buffer_store_dwordx4 v[4:7], v8, s[{srd_ws}:{srd_ws+3}], s80 offen offset:16")
        a("s_waitcnt vmcnt(0)")

def gen_gemm1(a, name, stamps=False, do_dma=True, do_read=True, do_mfma=True, do_epi=True, do_bar=True, fake16=False, once=False, loop_dma=True):
    kernel_begin(a, name)
    a("s_cmp_ge_u32 s2, 256")
    a(f"s_cbranch_scc1 {name}_done")
    if stamps: stamp(a, 0)
    a(f"s_load_dwordx2 s[4:5], s[0:1], {KA['u']}")
    a(f"s_load_dwordx4 s[8:11], s[0:1], {KA['wg']}")
    a(f"s_load_dwordx2 s[6:7], s[0:1], {KA['ws']}")
    a("v_lshrrev_b32 v1, 6, v0")
    a("v_and_b32 v0, 63, v0")
    a("s_nop 0")
    a("v_readfirstlane_b32 s32, v1")
    a("s_and_b32 s43, s2, 7")
    a("s_lshr_b32 s44, s2, 3")
    a("s_and_b32 s33, s44, 3")
    a("s_lshl_b32 s43, s43, 2")
    a("s_add_u32 s33, s33, s43")
    a("s_lshr_b32 s34, s44, 2")
    a("s_mul_i32 s43, s33, 224")
    a("s_and_b32 s45, s33, 1")
    a("s_lshl_b32 s44, s45, 5")
    a("s_add_u32 s35, s43, s44")
    a("s_cmp_eq_u32 s45, 0")
    a("s_cselect_b32 s44, 192, 0")
    a("s_add_u32 s36, s43, s44")
    a("s_lshl_b32 s43, s32, 4")
    a("v_lshrrev_b32 v1, 2, v0")
    a("v_add_u32 v1, s43, v1")
    a("v_mul_u32_u24 v1, 7168, v1")
    a("v_and_b32 v2, 3, v0")
    a("v_lshlrev_b32 v2, 4, v2")
    a("v_add3_u32 v2, v1, v2, s35")
    a("s_lshr_b32 s43, s32, 1")
    a("s_lshl_b32 s43, s43, 2")
    a("s_and_b32 s44, s32, 1")
    a("s_lshl_b32 s44, s44, 5")
    a("v_lshrrev_b32 v1, 1, v0")
    a("v_xor_b32 v1, s43, v1")
    a("v_add_u32 v1, s44, v1")
    a("v_mul_u32_u24 v1, 7168, v1")
    a("v_and_b32 v3, 1, v0")
    a("v_lshlrev_b32 v3, 4, v3")
    a("v_add3_u32 v3, v1, v3, s36")
    a("s_lshl_b32 s43, s34, 8")
    a("s_lshl_b32 s44, s32, 6")
    a("s_add_u32 s43, s43, s44")
    a("v_lshrrev_b32 v1, 3, v0")
    a("v_add_u32 v1, s43, v1")
    a("v_lshlrev_b32 v1, 11, v1")
    a("v_lshrrev_b32 v12, 4, v0")
    a("v_and_b32 v13, 7, v0")
    a("v_xor_b32 v12, v12, v13")
    a("v_xor_b32 v13, 4, v12")
    a("v_lshl_add_u32 v4, v12, 4, v1")
    a("v_lshl_add_u32 v5, v13, 4, v1")
    a("v_add_u32 v5, 0x4000, v5")
    for j in range(2, 8):
        a(f"v_add_u32 v{4+j}, 0x8000, v{2+j}")
    a("v_lshrrev_b32 v1, 5, v0")
    a("v_lshlrev_b32 v1, 3, v1")
    a("v_bfe_u32 v20, v0, 2, 2")
    a("v_add_u32 v1, v1, v20")
    a("v_bfe_u32 v20, v0, 4, 1")
    a("v_and_b32 v21, 3, v0")
    a("v_lshlrev_b32 v21, 3, v21")
    a("v_lshl_add_u32 v12, v1, 6, v21")
    a("v_lshl_add_u32 v12, v20, 5, v12")
    a("v_mul_u32_u24 v22, 14336, v20")
    a("v_lshl_add_u32 v22, v1, 5, v22")
    a("v_add_u32 v22, v22, v21")
    a("v_add_u32 v22, 6144, v22")
    a("v_lshl_add_u32 v13, v20, 7, v22")
    a("v_xor_b32 v20, 1, v20")
    a("v_lshl_add_u32 v14, v20, 7, v22")
    a("v_mov_b32 v15, v12"); a("v_mov_b32 v16, v13"); a("v_mov_b32 v17, v14")
    a("s_lshl_b32 s43, s32, 13")
    a(f"s_add_u32 s40, s43, {XBASE}")
    a("v_and_b32 v1, 31, v0")
    a("v_lshlrev_b32 v22, 7, v1")
    a("v_add_u32 v22, s40, v22")
    a("v_bfe_u32 v23, v0, 1, 3")
    a("v_lshrrev_b32 v24, 5, v0")
    a("v_xor_b32 v23, v23, v24")
    for q in range(4):
        a(f"v_xor_b32 v24, {2*q}, v23")
        a(f"v_lshl_add_u32 v{18+q}, v24, 4, v22")
    a("s_waitcnt lgkmcnt(0)")
    srd(a, 12, 4, 2048 * 2048)
    srd(a, 16, 8, 1024 * 7168)
    srd(a, 20, 10, 1024 * 7168)
    a("s_cmp_lt_u32 s32, 2")
    a("s_cselect_b32 s24, s8, s10")
    a("s_cselect_b32 s25, s17, s21")
    a(f"s_mov_b32 s26, {1024*7168:#x}")
    a("s_mov_b32 s27, 0x00020000")
    srd(a, 28, 6, 0x10000000)
    a("s_mul_i32 s46, s32, 7168")
    a("s_mov_b32 s37, 0")
    a("s_mov_b32 s38, 0")
    a("s_mov_b32 s39, s46")
    a("s_mov_b32 s41, 0")

    def wdma(m):
        if not do_dma: return []
        if m < 6:
            p = m >> 1
            s = 16 if (m & 1) == 0 else 20
            return [f"s_add_u32 m0, s39, {m*1024 - 64*p}\ns_nop 0\nbuffer_load_dwordx4 v2, s[{s}:{s+3}], s37 offen offset:{64*p} lds"]
        return [f"s_add_u32 m0, s39, {6*1024}\ns_nop 0\nbuffer_load_dwordx4 v3, s[24:27], s37 offen lds"]
    def xdma(j, par):
        if not do_dma: return []
        return [f"s_add_u32 m0, s40, {par*XSLOT + j*1024}\ns_nop 0\nbuffer_load_dwordx4 v{4+j}, s[12:15], s38 offen lds"]
    def round_adv():
        return [f"s_add_u32 s37, s37, {64*7168}\ns_add_u32 s38, s38, 128",
                f"s_cmp_ge_u32 s38, 2048\ns_cselect_b32 s38, 0x800000, s38",
                f"s_add_u32 s39, s39, {WSLOT}\ns_cmp_ge_u32 s39, {3*WSLOT}",
                f"s_cselect_b32 s39, s46, s39"]
    def wreads(q, b):
        if not do_read: return []
        r = []
        for m in range(6):
            d = wfrag(b, m); off = q * 7168 + m * 1024
            r.append(f"ds_read_b64_tr_b16 a[{d}:{d+1}], v15 offset:{off}")
            r.append(f"ds_read_b64_tr_b16 a[{d+2}:{d+3}], v15 offset:{off+256}")
        d = wfrag(b, 6); off = (q >> 1) * 7168 + (q & 1) * 512
        r.append(f"ds_read_b64_tr_b16 a[{d}:{d+1}], v16 offset:{off}")
        r.append(f"ds_read_b64_tr_b16 a[{d+2}:{d+3}], v17 offset:{off}")
        return r
    def xreads(par):
        if not do_read: return []
        r = []
        for q in range(4):
            for c in range(2):
                d = xfrag(par, q, c)
                r.append(f"ds_read_b128 a[{d}:{d+3}], v{18+q} offset:{par*XSLOT + c*4096}")
        return r
    def slot_adv():
        return [f"s_add_u32 s41, s41, {WSLOT}\ns_cmp_ge_u32 s41, {3*WSLOT}\ns_cselect_b32 s41, 0, s41",
                "v_add_u32 v15, s41, v12\nv_add_u32 v16, s41, v13\nv_add_u32 v17, s41, v14"]
    def mfmas(q, par):
        r = []
        if fake16:
            for m in range(7):
                for cc in range(2):
                    prs = []
                    for c in range(2):
                        d = 32 + (q & 1) * 112 + (m * 4 + cc * 2 + c) * 4; w = wfrag(q & 1, m); x = xfrag(par, q ^ cc, c)
                        prs.append(f"v_mfma_f32_16x16x32_bf16 v[{d}:{d+3}], a[{w}:{w+3}], a[{x}:{x+3}], v[{d}:{d+3}]")
                    r.append(prs)
            return r
        for m in range(7):
            for c in range(2):
                d = acc(m, c); w = wfrag(q & 1, m); x = xfrag(par, q, c)
                r.append(f"v_mfma_f32_32x32x16_bf16 v[{d}:{d+15}], a[{w}:{w+3}], a[{x}:{x+3}], v[{d}:{d+15}]" if do_mfma else "s_nop 0")
        return r

    for r in range(2):
        for m in range(7):
            for s in wdma(m): a(s)
        for j in range(8):
            for s in xdma(j, r): a(s)
        for s in round_adv(): a(s)
    for m in range(5):
        for s in wdma(m): a(s)
    for i in range(224):
        a(f"v_mov_b32 v{32+i}, 0")
    a("s_waitcnt vmcnt(20)")
    a("s_barrier")
    for s in xreads(0) + wreads(0, 0): a(s)
    if once:
        a("s_waitcnt vmcnt(0)"); a("s_barrier")
        for s in xreads(1) + wreads(1, 1): a(s)
        do_read = False
    if not loop_dma:
        a("s_waitcnt vmcnt(0)"); a("s_barrier")
        do_dma = False
    a("s_mov_b32 s42, 8")
    if stamps: stamp(a, 1)
    a("s_waitcnt lgkmcnt(0)")
    a.lines.append(".p2align 6")
    a.label(f"{name}_loop")
    for par in range(2):
        sl = {}
        def put(sl, items, g0, per):
            g = g0; n = 0
            for it in items:
                sl.setdefault(g, []).append(it); n += 1
                if n == per: g += 1; n = 0
        put(sl, wreads(1, 1), 0, 2)
        put(sl, wdma(5) + wdma(6) + xdma(0, par) + xdma(1, par) + xdma(2, par), 7, 1)
        placed(a, mfmas(0, par), sl)
        a("s_waitcnt lgkmcnt(0)")
        sl = {}
        put(sl, wreads(2, 0), 0, 2)
        put(sl, sum([xdma(j, par) for j in range(3, 8)], []), 7, 1)
        put(sl, round_adv(), 12, 2)
        placed(a, mfmas(1, par), sl)
        a("s_waitcnt vmcnt(15) lgkmcnt(0)")
        sl = {}
        put(sl, wreads(3, 1), 0, 2)
        put(sl, xreads(1 - par), 7, 2)
        put(sl, slot_adv(), 12, 1)
        placed(a, mfmas(2, par), sl)
        a("s_waitcnt lgkmcnt(0)")
        if do_bar: a("s_barrier")
        sl = {}
        put(sl, wreads(0, 0), 0, 2)
        put(sl, sum([wdma(m) for m in range(5)], []), 7, 1)
        if par == 1:
            put(sl, ["s_sub_u32 s42, s42, 1", "s_cmp_lg_u32 s42, 0"], 12, 1)
        placed(a, mfmas(3, par), sl)
        a("s_waitcnt lgkmcnt(0)")
    a(f"s_cbranch_scc1 {name}_loop")
    if stamps: stamp(a, 2)
    if do_epi:
        a("s_mov_b32 s48, 0xbfb8aa3b")
        a("s_mov_b32 s49, 0xbfb8aa3b")
        a("v_lshlrev_b32 v1, 4, v0")
        a("s_lshl_b32 s43, s34, 3")
        a("s_lshl_b32 s44, s32, 1")
        a("s_add_u32 s43, s43, s44")
        a("s_mul_i32 s43, s43, 224")
        a("s_mul_i32 s44, s33, 7")
        a("s_add_u32 s43, s43, s44")
        a("s_lshl_b32 s43, s43, 10")
        if H_OFF: a(f"s_add_u32 s43, s43, {H_OFF}")
        a("s_lshl_b32 s44, s45, 10")
        a("s_add_u32 s50, s43, s44")
        a(f"s_add_u32 s51, s50, {224*1024}")
        a("s_add_u32 s52, s50, 4096")
        a("s_add_u32 s53, s51, 4096")
        a("s_cmp_eq_u32 s45, 0")
        a("s_cselect_b32 s44, 6144, 0")
        a("s_add_u32 s54, s43, s44")
        a(f"s_add_u32 s55, s54, {224*1024}")
        a("s_nop 7")
        frs = []
        for p in range(3):
            for c in range(2):
                for hf in range(2):
                    r = 2 * p + hf
                    so = (50 + c) if r < 4 else (52 + c)
                    frs.append((acc(2*p, c) + 8*hf, acc(2*p+1, c) + 8*hf, so, (r & 3) * 1024))
        for c in range(2):
            frs.append((acc(6, c), acc(6, c) + 8, 54 + c, 0))
        for n, (g, u, so, imm) in enumerate(frs):
            t = 8 + (n & 1) * 8
            for j in range(0, 8, 2):
                a(f"v_pk_mul_f32 v[{t+j}:{t+j+1}], v[{g+j}:{g+j+1}], s[48:49]")
            for j in range(8):
                a(f"v_exp_f32 v{t+j}, v{t+j}")
            for j in range(0, 8, 2):
                a(f"v_pk_mul_f32 v[{g+j}:{g+j+1}], v[{g+j}:{g+j+1}], v[{u+j}:{u+j+1}]")
            for j in range(0, 8, 2):
                a(f"v_pk_add_f32 v[{t+j}:{t+j+1}], v[{t+j}:{t+j+1}], 1.0 op_sel_hi:[1,0]")
            for j in range(8):
                a(f"v_rcp_f32 v{t+j}, v{t+j}")
            a("s_nop 0")
            for j in range(0, 8, 2):
                a(f"v_pk_mul_f32 v[{g+j}:{g+j+1}], v[{g+j}:{g+j+1}], v[{t+j}:{t+j+1}]")
            for j in range(4):
                a(f"v_cvt_pk_bf16_f32 v{g+j}, v{g+2*j}, v{g+2*j+1}")
            a(f"buffer_store_dwordx4 v[{g}:{g+3}], v1, s[28:31], s{so} offen offset:{imm}")
    if stamps:
        a("s_waitcnt vmcnt(0)")
        stamp(a, 3)
        stamp_store(a, 28, [(0, 3, 0), (1, 2, 1), (0, 1, 2), (2, 3, 3)])
    a.label(f"{name}_done")
    a("s_endpgm")
    return kernel_desc(name, 512, 96, 256)

if __name__ == "__main__":
    import sys
    def variant(fn, **kw):
        a = Asm()
        name = "g1_kernel"
        a.lines.append(f"; @launch kernel={name} grid=(256,1,1) block=(256,1,1) lds={G1_LDS}")
        a.lines.append('.amdgcn_target "amdgcn-amd-amdhsa--gfx950"')
        a.lines.append(".text")
        d = gen_gemm1(a, name, stamps=True, **kw)
        open(fn, "w").write(a.text() + '.section .rodata,"a"\n' + d)
    variant("g1_full.s")
    variant("g1_once32.s", once=True, loop_dma=False)
    variant("g1_once16.s", once=True, loop_dma=False, fake16=True)
    variant("g1_rd32.s", loop_dma=False)
    variant("g1_rd16.s", loop_dma=False, fake16=True)
    variant("g1_dm32.s", once=True)
    variant("g1_dm16.s", once=True, fake16=True)
    variant("g1_fake16.s", fake16=True)
    variant("g1_nodma.s", do_dma=False)
    variant("g1_noread.s", do_read=False)
    variant("g1_dmaonly.s", do_read=False, do_mfma=False)
    variant("g1_mfmaonly.s", do_read=False, do_dma=False, do_bar=False)
```

```python
from asmlib import *
from gemm1 import stamp, stamp_store, H_OFF, H_BYTES

A_OFF = 0x1000000
G_OFF = 0x1400000
DEPTH = 4
WRING = DEPTH * 4096
G2_LDS = 98304

def acc2(dt, tt):
    return 32 + (tt * 4 + dt) * 4
def hfrag(s, tt):
    return s * 32 + tt * 4
def wfrag2(b, dt):
    return 128 + b * 16 + dt * 4

def gen_gemm2(a, name, stamps=False, natural=False, prefetch=True, pf_dist=8):
    kernel_begin(a, name)
    a("s_cmp_ge_u32 s2, 256")
    a(f"s_cbranch_scc1 {name}_done")
    if stamps: stamp(a, 0)
    a(f"s_load_dwordx2 s[4:5], s[0:1], {KA['wd']}")
    a(f"s_load_dwordx2 s[6:7], s[0:1], {KA['ws']}")
    a(f"s_load_dwordx2 s[8:9], s[0:1], {KA['out']}")
    a("v_lshrrev_b32 v1, 6, v0")
    a("v_and_b32 v0, 63, v0")
    a("s_nop 0")
    a("v_readfirstlane_b32 s32, v1")
    a("s_and_b32 s43, s2, 7")
    a("s_lshr_b32 s44, s2, 3")
    a("s_lshr_b32 s45, s43, 1")
    a("s_lshl_b32 s45, s45, 2")
    a("s_and_b32 s46, s44, 3")
    a("s_add_u32 s34, s45, s46")
    a("s_and_b32 s45, s43, 1")
    a("s_lshl_b32 s45, s45, 3")
    a("s_lshr_b32 s47, s44, 2")
    a("s_add_u32 s33, s45, s47")
    a("v_lshrrev_b32 v1, 5, v0")
    a("v_lshlrev_b32 v1, 10, v1")
    a("v_bfe_u32 v2, v0, 4, 1")
    a("v_lshl_add_u32 v1, v2, 9, v1")
    a("v_and_b32 v2, 15, v0")
    a("v_lshl_add_u32 v4, v2, 4, v1")
    for j in range(1, 4):
        a(f"v_add_u32 v{4+j}, {224*1024}, v{3+j}")
    a(f"s_mul_i32 s37, s34, {4*224}")
    a("s_mul_i32 s43, s32, 56")
    a("s_add_u32 s37, s37, s43")
    a("s_lshl_b32 s37, s37, 10")
    if H_OFF: a(f"s_add_u32 s37, s37, {H_OFF}")
    a("v_lshrrev_b32 v1, 3, v0")
    if natural:
        a("v_bfe_u32 v2, v1, 1, 1")
    else:
        a("v_bfe_u32 v2, v1, 1, 2")
    a("v_lshlrev_b32 v2, 1, v2")
    a("v_and_b32 v3, 7, v0")
    a("v_xor_b32 v2, v2, v3")
    a("v_lshlrev_b32 v1, 11, v1")
    a("v_lshl_add_u32 v8, v2, 4, v1")
    if natural:
        a("v_xor_b32 v9, 64, v8")
        a("v_add_u32 v9, 0x4000, v9")
    else:
        a("v_add_u32 v9, 0x4000, v8")
    a("v_add_u32 v10, 0x8000, v8")
    a("v_add_u32 v11, 0x8000, v9")
    a(f"s_mul_i32 s38, s32, {896*2048}")
    a("s_lshl_b32 s43, s33, 7")
    a("s_add_u32 s38, s38, s43")
    a(f"s_mul_i32 s40, s32, {WRING}")
    a("v_lshrrev_b32 v1, 4, v0")
    a("v_bfe_u32 v2, v0, 2, 2")
    if natural:
        a("v_lshl_add_u32 v1, v1, 3, v2")
        a("v_bfe_u32 v2, v1, 1, 1")
        a("v_bfe_u32 v3, v1, 3, 1")
        a("v_lshl_add_u32 v2, v3, 1, v2")
        second = 512
    else:
        a("v_lshrrev_b32 v3, 1, v1")
        a("v_and_b32 v1, 1, v1")
        a("v_lshl_add_u32 v1, v1, 2, v2")
        a("v_lshl_add_u32 v1, v3, 4, v1")
        a("v_bfe_u32 v2, v1, 1, 2")
        second = 1024
    a("v_lshlrev_b32 v1, 7, v1")
    a("v_lshl_add_u32 v1, v2, 5, v1")
    a("v_and_b32 v2, 3, v0")
    a("v_lshl_add_u32 v1, v2, 3, v1")
    a("v_add_u32 v12, s40, v1")
    for dt in range(1, 4):
        a(f"v_xor_b32 v{12+dt}, {dt*32}, v12")
    if prefetch:
        a("v_bfe_u32 v1, v0, 3, 2")
        a("v_lshlrev_b32 v1, 11, v1")
        a("v_bfe_u32 v2, v0, 1, 2")
        a(f"v_mul_u32_u24 v2, {224*1024}, v2")
        a("v_and_b32 v3, 1, v0")
        a("v_lshlrev_b32 v3, 7, v3")
        a("v_add3_u32 v16, v1, v2, v3")
        a("s_lshl_b32 s43, s47, 8")
        a("v_add_u32 v16, s43, v16")
        a("v_and_b32 v1, 31, v0")
        a("v_lshlrev_b32 v1, 13, v1")
        a("s_lshl_b32 s43, s46, 11")
        a("v_add_u32 v17, s43, v1")
    a("s_waitcnt lgkmcnt(0)")
    srd(a, 12, 4, 3584 * 2048)
    srd(a, 28, 6, 0x10000000)
    srd(a, 24, 8, 2048 * 2048)
    a(f"s_add_u32 s48, s37, {56*1024}")
    a(f"s_add_u32 s49, s38, {896*2048}")
    if prefetch:
        a("s_mov_b32 s50, s37"); a("s_mov_b32 s51, s38")

    def pf():
        return ["buffer_load_dword v18, v16, s[28:31], s50 offen\nbuffer_load_dword v19, v17, s[12:15], s51 offen",
                f"s_add_u32 s50, s50, 8192\ns_add_u32 s51, s51, {128*2048}\ns_cmp_ge_u32 s51, s49\ns_cselect_b32 s50, 0x7ff00000, s50\ns_cselect_b32 s51, 0x7ff00000, s51"]
    def loads(s):
        r = []
        for j in range(4):
            r.append(f"s_add_u32 m0, s40, {s*4096 + j*1024}\ns_nop 0\nbuffer_load_dwordx4 v{8+j}, s[12:15], s38 offen lds")
        for tt in range(8):
            d = hfrag(s, tt)
            r.append(f"buffer_load_dwordx4 a[{d}:{d+3}], v{4 + (tt >> 1)}, s[28:31], s37 offen offset:{(tt & 1) * 256}")
        return r
    def adv():
        return [f"s_add_u32 s37, s37, 2048\ns_add_u32 s38, s38, {32*2048}\ns_cmp_ge_u32 s38, s49\ns_cselect_b32 s37, 0x7ff00000, s37\ns_cselect_b32 s38, 0x7ff00000, s38"]
    def wreads(s, b):
        r = []
        for dt in range(4):
            d = wfrag2(b, dt)
            r.append(f"ds_read_b64_tr_b16 a[{d}:{d+1}], v{12+dt} offset:{s*4096}")
            r.append(f"ds_read_b64_tr_b16 a[{d+2}:{d+3}], v{12+dt} offset:{s*4096+second}")
        return r
    def mfmas(s, b):
        r = []
        for tt in range(8):
            for dt in range(4):
                d = acc2(dt, tt); w = wfrag2(b, dt); h = hfrag(s, tt)
                r.append(f"v_mfma_f32_16x16x32_bf16 v[{d}:{d+3}], a[{w}:{w+3}], a[{h}:{h+3}], v[{d}:{d+3}]")
        return r
    npf = 2 if prefetch else 0
    if prefetch:
        for _ in range(pf_dist // 4 + 1):
            for s in pf(): a(s)
    for s in range(DEPTH - 1):
        for x in loads(s) + adv(): a(x)
    for i in range(128):
        a(f"v_mov_b32 v{32+i}, 0")
    a(f"s_waitcnt vmcnt({12*(DEPTH-2)})")
    for x in wreads(0, 0): a(x)
    a("s_mov_b32 s42, 7")
    if stamps: stamp(a, 1)
    a.lines.append(".p2align 6")
    a.label(f"{name}_loop")
    for s in range(DEPTH):
        a("s_waitcnt lgkmcnt(0)")
        sl = {}
        ld = loads((s + DEPTH - 1) % DEPTH)
        g = 0
        for x in ld:
            sl.setdefault(g, []).append(x); g += 2
        sl.setdefault(23, []).extend(adv())
        extra = npf if s in (1, 2) else 0
        sl.setdefault(23, []).append(f"s_waitcnt vmcnt({24 + extra})")
        g = 24
        for x in wreads((s + 1) % DEPTH, (s + 1) & 1):
            sl.setdefault(g, []).append(x); g += 1
        if s == 0 and prefetch:
            p = pf()
            sl.setdefault(30, []).append(p[0]); sl.setdefault(31, []).append(p[1])
        if s == DEPTH - 1:
            sl.setdefault(31, []).append("s_sub_u32 s42, s42, 1\ns_cmp_lg_u32 s42, 0")
        placed(a, mfmas(s, s & 1), sl)
    a(f"s_cbranch_scc1 {name}_loop")
    if stamps: stamp(a, 2)
    a("v_lshrrev_b32 v1, 4, v0")
    a("v_lshlrev_b32 v1, 14, v1")
    a("v_and_b32 v2, 15, v0")
    a("v_lshl_add_u32 v1, v2, 3, v1")
    a("s_lshl_b32 s43, s34, 7")
    a("s_lshl_b32 s44, s32, 5")
    a("s_add_u32 s43, s43, s44")
    a("s_lshl_b32 s44, s33, 18")
    a("s_lshl_b32 s45, s43, 3")
    a("s_add_u32 s44, s44, s45")
    a(f"s_add_u32 s44, s44, {A_OFF}")
    a("s_waitcnt vmcnt(0) lgkmcnt(0)")
    for dt in range(4):
        for c in range(2):
            r = 160 + (c * 4 + dt) * 2
            a(f"buffer_load_dwordx2 v[{r}:{r+1}], v1, s[28:31], s44 offen offset:{c*128}")
        if dt < 3: a(f"s_add_u32 s44, s44, 65536")
    a("v_lshlrev_b32 v3, 2, v2")
    a("s_lshl_b32 s45, s43, 2")
    a(f"s_add_u32 s45, s45, {G_OFF}")
    a("buffer_load_dword v176, v3, s[28:31], s45 offen")
    a("buffer_load_dword v177, v3, s[28:31], s45 offen offset:64")
    a("s_barrier")
    a("v_lshlrev_b32 v4, 4, v0")
    for w in range(4):
        if w < 3:
            a(f"s_cmp_lg_u32 s32, {w}")
            a(f"s_cbranch_scc1 {name}_red{w+1}")
        for k in range(3):
            o = (w + 1 + k) & 3
            base = (o * 3 + k) * 8192
            if base + 8192 > 65536:
                a(f"v_add_u32 v5, {base}, v4"); vb, bo = 5, 0
            else:
                vb, bo = 4, base
            for c in range(2):
                for dt in range(4):
                    r = acc2(dt, 2 * o + c)
                    a(f"ds_write_b128 v{vb}, v[{r}:{r+3}] offset:{bo + (c*4+dt)*1024}")
        for c in range(2):
            for dt in range(4):
                r = acc2(dt, 2 * w + c)
                for e in range(4):
                    a(f"v_mov_b32 v{180 + (c*4+dt)*4 + e}, v{r+e}")
        if w < 3:
            a(f"s_branch {name}_red4")
        a.label(f"{name}_red{w+1}")
    a("s_mul_i32 s46, s32, 24576")
    a("v_add_u32 v5, s46, v4")
    a("s_waitcnt lgkmcnt(0)")
    a("s_barrier")
    for k in range(3):
        for i in range(8):
            r = 32 + (k * 8 + i) * 4
            a(f"ds_read_b128 v[{r}:{r+3}], v5 offset:{k*8192 + i*1024}")
    a("v_lshlrev_b32 v6, 11, v2")
    a("v_lshrrev_b32 v7, 4, v0")
    a("v_lshl_add_u32 v6, v7, 3, v6")
    a("s_lshl_b32 s44, s43, 11")
    a("s_lshl_b32 s45, s33, 7")
    a("s_add_u32 s44, s44, s45")
    a("s_add_u32 s45, s44, 0x8000")
    a("s_waitcnt vmcnt(0)")
    a("v_sub_f32 v178, 1.0, v176")
    a("v_sub_f32 v179, 1.0, v177")
    a("v_cvt_pk_bf16_f32 v178, v178, v179")
    a("v_and_b32 v179, 0xffff0000, v178")
    a("v_lshlrev_b32 v178, 16, v178")
    for i in range(8):
        c = i >> 2; dt = i & 3
        o = 180 + i * 4
        a(f"s_waitcnt lgkmcnt({min(15, 7 - i + 0)})" if False else "")
    a("s_waitcnt lgkmcnt(0)")
    for i in range(8):
        c = i >> 2; dt = i & 3
        o = 180 + i * 4
        for k in range(3):
            r = 32 + (k * 8 + i) * 4
            a(f"v_pk_add_f32 v[{o}:{o+1}], v[{o}:{o+1}], v[{r}:{r+1}]")
            a(f"v_pk_add_f32 v[{o+2}:{o+3}], v[{o+2}:{o+3}], v[{r+2}:{r+3}]")
        ar = 160 + i * 2
        a(f"v_lshlrev_b32 v8, 16, v{ar}"); a(f"v_and_b32 v9, 0xffff0000, v{ar}")
        a(f"v_lshlrev_b32 v10, 16, v{ar+1}"); a(f"v_and_b32 v11, 0xffff0000, v{ar+1}")
        for e in range(4):
            a(f"v_mul_f32 v{8+e}, v{176+c}, v{8+e}")
        for e in range(4):
            a(f"v_fma_f32 v{o+e}, v{178+c}, v{o+e}, v{8+e}")
        a(f"v_cvt_pk_bf16_f32 v{o}, v{o}, v{o+1}")
        a(f"v_cvt_pk_bf16_f32 v{o+1}, v{o+2}, v{o+3}")
        a(f"buffer_store_dwordx2 v[{o}:{o+1}], v6, s[24:27], s{44+c} offen offset:{dt*32}")
    if stamps:
        a("s_waitcnt vmcnt(0)")
        stamp(a, 3)
        stamp_store(a, 28, [(0, 3, 4), (1, 2, 5), (0, 1, 6), (2, 3, 7)])
    a.label(f"{name}_done")
    a("s_endpgm")
    return kernel_desc(name, 512, 96, 256)
```

```python
from asmlib import *
from gemm1 import stamp, stamp_store
from gemm2 import A_OFF, G_OFF

UROW = 4608
XYP = 528
XYW = 59 * XYP
XY0 = 4 * UROW
SSM_LDS = XY0 + 4 * XYW
LOG2E = 0x3fb8aa3b
INV2PI = 0x3e22f983

class LgkmTracker:
    def __init__(self, a): self.a = a; self.n = 0; self.done = 0
    def issue(self, s):
        self.a(s); self.n += 1; return self.n
    def need(self, idx):
        if idx <= self.done: return
        k = self.n - idx
        if k > 15: return_k = 15
        else: return_k = k
        self.a(f"s_waitcnt lgkmcnt({return_k})")
        self.done = self.n - return_k

def cmul(a, o, x, w):
    a(f"v_pk_mul_f32 v[{o}:{o+1}], v[{x}:{x+1}], v[{w}:{w+1}]")
    a(f"v_pk_mul_f32 v[{o+2}:{o+3}], v[{x}:{x+1}], v[{w+2}:{w+3}]")
    a(f"v_pk_fma_f32 v[{o}:{o+1}], v[{x+2}:{x+3}], v[{w+2}:{w+3}], v[{o}:{o+1}] neg_lo:[1,0,0] neg_hi:[1,0,0]")
    a(f"v_pk_fma_f32 v[{o+2}:{o+3}], v[{x+2}:{x+3}], v[{w}:{w+1}], v[{o+2}:{o+3}]")

def gen_ssm(a, name, stamps=False):
    kernel_begin(a, name)
    a("s_cmp_ge_u32 s2, 256")
    a(f"s_cbranch_scc1 {name}_done")
    if stamps: stamp(a, 0)
    a("s_load_dwordx16 s[4:19], s[0:1], 0")
    a(f"s_load_dwordx2 s[20:21], s[0:1], {KA['Dskip']}")
    a(f"s_load_dwordx2 s[22:23], s[0:1], {KA['gate_w']}")
    a(f"s_load_dwordx2 s[24:25], s[0:1], {KA['ws']}")
    a("v_lshrrev_b32 v2, 6, v0")
    a("v_and_b32 v1, 63, v0")
    a("s_nop 0")
    a("v_readfirstlane_b32 s32, v2")
    a("s_and_b32 s33, s2, 7")
    a("s_lshl_b32 s33, s33, 5")
    a("s_lshr_b32 s34, s2, 3")
    a("s_add_u32 s33, s33, s34")
    a("s_lshl_b32 s34, s33, 2")
    a("s_add_u32 s34, s34, s32")
    a("v_lshlrev_b32 v10, 14, v0")
    a("s_lshl_b32 s35, s33, 3")
    a("s_add_u32 s36, s35, 4096"); a("s_add_u32 s37, s35, 8192"); a("s_add_u32 s38, s35, 12288")
    a("v_lshlrev_b32 v11, 2, v1")
    a("s_lshl_b32 s39, s34, 8")
    a("s_lshl_b32 s40, s34, 1")
    a("v_mov_b32 v12, 0")
    a("v_lshlrev_b32 v13, 4, v1")
    a("s_lshl_b32 s41, s2, 3"); a("s_lshl_b32 s42, s32, 1"); a("s_add_u32 s41, s41, s42")
    a("s_lshl_b32 s42, s41, 11")
    a("s_waitcnt lgkmcnt(0)")
    for i in range(6):
        srd(a, 44, 6 + 2 * i, 1024 * 256)
        a(f"buffer_load_dword v{2+i}, v11, s[44:47], s39 offen")
    srd(a, 44, 18, 2048)
    a("buffer_load_ushort v8, v12, s[44:47], s40 offen")
    srd(a, 44, 20, 2048)
    a("buffer_load_ushort v9, v12, s[44:47], s40 offen")
    srd(a, 48, 4, 2048 * 2048)
    srd(a, 28, 24, 0x10000000)
    srd(a, 44, 22, 2048)
    a("buffer_load_dwordx4 v[96:99], v13, s[44:47], 0 offen")
    a("buffer_load_dwordx4 v[100:103], v13, s[44:47], 0 offen offset:1024")
    for r in range(2):
        for hf in range(2):
            d = 80 + r * 8 + hf * 4
            a(f"buffer_load_dwordx4 v[{d}:{d+3}], v13, s[48:51], s42 offen offset:{r*2048 + hf*1024}")
    for i in range(8):
        a(f"buffer_load_dwordx2 v[{64+2*i}:{65+2*i}], v10, s[48:51], s{35 + (i >> 1)} offen offset:{(i & 1) * 2048}")
    a(f"s_mul_i32 s43, s32, {XYW}")
    a(f"s_add_u32 s43, s43, {XY0}")
    a("v_lshlrev_b32 v14, 3, v1")
    a("v_add_u32 v14, s43, v14")
    a(f"s_mul_i32 s52, s32, {UROW}")
    a("v_lshlrev_b32 v15, 3, v1")
    a("v_add_u32 v15, s52, v15")
    a("v_mov_b32 v16, 0"); a("v_mov_b32 v17, 0")
    a("ds_write_b64 v15, v[16:17]")
    a(f"s_mov_b32 s54, {LOG2E:#x}"); a(f"s_mov_b32 s55, {LOG2E:#x}")
    a(f"s_mov_b32 s56, {INV2PI:#x}"); a(f"s_mov_b32 s57, {INV2PI:#x}")
    a("s_waitcnt vmcnt(14)")
    a("v_lshlrev_b32 v8, 16, v8")
    a("v_mul_f32 v8, s54, v8")
    a("v_exp_f32 v8, v8")
    a("v_lshlrev_b32 v9, 16, v9")
    a("v_cvt_pk_bf16_f32 v8, v8, v8")
    a("v_and_b32 v18, 0xffff0000, v8")
    a("v_mov_b32 v19, v18")
    for i in range(6):
        a(f"v_lshlrev_b32 v{20+2*i}, 16, v{2+i}")
        a(f"v_and_b32 v{21+2*i}, 0xffff0000, v{2+i}")
    for i in range(4):
        a(f"v_pk_mul_f32 v[{20+2*i}:{21+2*i}], v[{20+2*i}:{21+2*i}], v[18:19]")
    a("v_pk_mul_f32 v[20:21], v[20:21], s[54:55]")
    a("v_pk_mul_f32 v[22:23], v[22:23], s[56:57]")
    cmul(a, 44, 28, 24)
    for (dst, e) in ((32, 1), (36, 8), (40, 256)):
        sc = {1: None, 8: 0x41000000, 256: 0x43800000}[e]
        for m in range(2):
            if sc is None:
                a(f"v_mov_b32 v2, v{20+m}"); a(f"v_mov_b32 v3, v{22+m}")
            else:
                a(f"v_mul_f32 v2, {sc:#x}, v{20+m}"); a(f"v_mul_f32 v3, {sc:#x}, v{22+m}")
            a("v_fract_f32 v3, v3")
            a("v_exp_f32 v2, v2")
            a("v_cos_f32 v4, v3")
            a("v_sin_f32 v5, v3")
            a("s_nop 0")
            a(f"v_mul_f32 v{dst+m}, v2, v4")
            a(f"v_mul_f32 v{dst+2+m}, v2, v5")
    tog = [0]
    def emit(row, x, neg):
        d = 2 + 2 * tog[0]; tog[0] = (tog[0] + 1) % 3
        n = "-" if neg else ""
        a(f"v_cvt_pk_bf16_f32 v{d}, v{x}, v{x+1}")
        a(f"v_cvt_pk_bf16_f32 v{d+1}, {n}v{x+2}, {n}v{x+3}")
        a(f"ds_write_b64 v14, v[{d}:{d+1}] offset:{row*XYP}")
    W1, W8, W256 = 32, 36, 40
    XS = {0: 44, 2: 48, 4: 52, 6: 56, 8: 60}
    TMP = 104
    a("v_mov_b32 v2, 0x3f803f80"); a("v_mov_b32 v3, 0")
    a(f"ds_write_b64 v14, v[2:3] offset:{27*XYP}")
    tog[0] = 1
    emit(28, W8, False)
    ycur = W8; yb = 1
    def ystep():
        nonlocal ycur, yb
        if yb >= 31: return
        o = 108 if ycur != 108 else 112
        cmul(a, o, ycur, W8); yb += 1; ycur = o
        emit(27 + yb, o, False)
    emit(0, XS[0], True)
    prev = XS[0]
    for c in range(1, 9):
        o = XS[c] if c in XS else TMP
        cmul(a, o, prev, W1); prev = o
        if c < 8: emit(c, o, True)
        ystep()
    ALT = {0: 116, 4: 120, 8: 124}
    cur = dict(XS)
    row = 8
    for c in (0, 2, 4, 6, 8):
        o = ALT[c] if c in ALT else TMP
        cmul(a, o, cur[c], W256); emit(row, o, True); row += 1
        if c in ALT: cur[c], ALT[c] = o, cur[c]
        ystep()
    for lvl in range(2):
        for c in (0, 4, 8):
            o = ALT[c]; cmul(a, o, cur[c], W256); emit(row, o, True); row += 1
            cur[c], ALT[c] = o, cur[c]
            ystep()
    for lvl in range(4):
        for c in (0, 8):
            o = ALT[c]; cmul(a, o, cur[c], W256); emit(row, o, True); row += 1
            cur[c], ALT[c] = o, cur[c]
            ystep()
    assert row == 27
    while yb < 31: ystep()
    a("v_and_b32 v2, 31, v1")
    a("v_lshrrev_b32 v3, 3, v2")
    a("v_and_b32 v4, 7, v2")
    a("v_lshrrev_b32 v5, 5, v1")
    a("v_lshlrev_b32 v5, 4, v5")
    a("v_add_u32 v5, s43, v5")
    a("v_cmp_lt_u32 vcc, 4, v4")
    a("v_lshlrev_b32 v6, 1, v3")
    a("v_addc_co_u32 v6, vcc, 19, v6, vcc")
    a(f"v_mul_u32_u24 v6, {XYP}, v6")
    a("v_add_u32 v21, v6, v5")
    a("v_mov_b32 v6, 0x76543210"); a("v_mov_b32 v7, 0")
    a("v_mov_b32 v22, 0x43222100"); a("v_mov_b32 v23, 0x22111000")
    a("v_cmp_eq_u32 vcc, 1, v3"); a("s_nop 1")
    a("v_cndmask_b32 v6, v6, v22, vcc"); a("v_cndmask_b32 v7, v7, 8, vcc")
    a("v_cmp_eq_u32 vcc, 2, v3"); a("s_nop 1")
    a("v_cndmask_b32 v6, v6, v23, vcc"); a("v_cndmask_b32 v7, v7, 13, vcc")
    a("v_cmp_eq_u32 vcc, 3, v3"); a("s_nop 1")
    a("v_cndmask_b32 v6, v6, v23, vcc"); a("v_cndmask_b32 v7, v7, 16, vcc")
    a("v_lshlrev_b32 v4, 2, v4")
    a("v_bfe_u32 v6, v6, v4, 4")
    a("v_add_u32 v6, v6, v7")
    a(f"v_mul_u32_u24 v6, {XYP}, v6")
    a("v_add_u32 v20, v6, v5")
    a(f"v_mul_u32_u24 v6, {XYP}, v2")
    a("v_add_u32 v22, v6, v5")
    a("s_waitcnt lgkmcnt(0)")
    lg = LgkmTracker(a)
    ids = {}
    def kg_reads(k):
        b = (k % 4) * 12
        lg.issue(f"ds_read_b128 a[{b}:{b+3}], v20 offset:{k*32}")
        lg.issue(f"ds_read_b128 a[{b+4}:{b+7}], v21 offset:{k*32}")
        ids[k] = lg.issue(f"ds_read_b128 a[{b+8}:{b+11}], v22 offset:{27*XYP + k*32}")
    for k in range(3): kg_reads(k)
    for k in range(16):
        lg.need(ids[k])
        b = (k % 4) * 12
        c0 = "0" if k == 0 else "v[128:143]"; c1 = "0" if k == 0 else "v[144:159]"
        a(f"v_mfma_f32_32x32x16_bf16 v[128:143], a[{b}:{b+3}], a[{b+8}:{b+11}], {c0}")
        a(f"v_mfma_f32_32x32x16_bf16 v[144:159], a[{b+4}:{b+7}], a[{b+8}:{b+11}], {c1}")
        if k + 3 < 16: kg_reads(k + 3)
    a("s_waitcnt vmcnt(0)")
    a("s_mov_b32 s58, 0x05040100"); a("s_mov_b32 s59, 0x07060302")
    a("v_lshlrev_b32 v2, 4, v0")
    a("v_add_u32 v2, 512, v2")
    for ch in range(4):
        sel = 58 + (ch & 1); wd = ch >> 1
        t = 24 + (ch & 1) * 4
        for p in range(4):
            a(f"v_perm_b32 v{t+p}, v{64 + 2*(2*p+1) + wd}, v{64 + 2*(2*p) + wd}, s{sel}")
        a(f"ds_write_b128 v2, v[{t}:{t+3}] offset:{ch*UROW}")
    a("v_and_b32 v3, 1, v1")
    a("v_cmp_eq_u32 vcc, 1, v3")
    a("v_and_b32 v3, 31, v1")
    a("v_lshlrev_b32 v3, 4, v3")
    a("v_lshrrev_b32 v4, 5, v1")
    a("v_lshl_add_u32 v3, v4, 3, v3")
    a("v_add_u32 v3, s43, v3")
    for q in range(4):
        a(f"v_cndmask_b32 v{144+4*q}, v{144+4*q}, v{145+4*q}, vcc")
    for G in range(8):
        r = 128 + 4 * G
        a(f"v_cvt_pk_bf16_f32 v{r}, v{r}, v{r+1}")
        a(f"v_cvt_pk_bf16_f32 v{r+1}, v{r+2}, v{r+3}")
        a(f"ds_write_b64 v3, v[{r}:{r+1}] offset:{64 + G*512}")
    a("v_and_b32 v4, 7, v1")
    a("v_lshlrev_b32 v4, 3, v4")
    a("v_add_u32 v4, s43, v4")
    a("ds_write_b64 v4, v[16:17]")
    a("v_mov_b32 v40, 0x3f803f80")
    for i in range(8):
        a(f"v_lshlrev_b32 v{44+2*i}, 16, v{96+i}")
        a(f"v_and_b32 v{45+2*i}, 0xffff0000, v{96+i}")
    for r in range(2):
        a(f"v_mov_b32 v{32+r}, 0")
    for i in range(8):
        for r in range(2):
            x = 80 + r * 8 + i; t = 34 + 2 * r
            a(f"v_lshlrev_b32 v{t}, 16, v{x}")
            a(f"v_and_b32 v{t+1}, 0xffff0000, v{x}")
            a(f"v_pk_mul_f32 v[{t}:{t+1}], v[{t}:{t+1}], v[{44+2*i}:{45+2*i}]")
            a(f"v_cvt_pk_bf16_f32 v{t}, v{t}, v{t+1}")
            a(f"v_lshlrev_b32 v{t+1}, 16, v{t}")
            a(f"v_and_b32 v{t}, 0xffff0000, v{t}")
            a(f"v_add_f32 v{32+r}, v{32+r}, v{t+1}")
            a(f"v_add_f32 v{32+r}, v{32+r}, v{t}")
    for sh in ("row_shr:1", "row_shr:2", "row_shr:4", "row_shr:8", "row_bcast:15 row_mask:0xa", "row_bcast:31 row_mask:0xc"):
        a("s_nop 1")
        for r in range(2):
            m = "" if "row_mask" in sh else " row_mask:0xf"
            a(f"v_add_f32_dpp v{32+r}, v{32+r}, v{32+r} {sh}{m} bank_mask:0xf")
    a("s_nop 1")
    a("v_readlane_b32 s60, v32, 63")
    a("v_readlane_b32 s61, v33, 63")
    a("v_and_b32 v34, 1, v1")
    a("v_cmp_eq_u32 vcc, 1, v34")
    a("v_mov_b32 v32, s60"); a("v_mov_b32 v33, s61")
    a("v_cndmask_b32 v32, v32, v33, vcc")
    a("v_cvt_pk_bf16_f32 v32, v32, v32")
    a("v_and_b32 v32, 0xffff0000, v32")
    a("v_mul_f32 v32, s54, v32")
    a("v_exp_f32 v32, -v32")
    a("s_nop 0")
    a("v_add_f32 v32, 1.0, v32")
    a("v_rcp_f32 v32, v32")
    a("s_nop 0")
    a("v_cvt_pk_bf16_f32 v32, v32, v32")
    a("v_and_b32 v32, 0xffff0000, v32")
    a("v_lshlrev_b32 v34, 2, v34")
    a("s_lshl_b32 s60, s41, 2")
    a(f"s_add_u32 s60, s60, {G_OFF}")
    a("buffer_store_dword v32, v34, s[28:31], s60 offen")
    a("v_bfe_u32 v2, v1, 4, 1")
    a("v_lshrrev_b32 v3, 5, v1")
    a("v_bfe_u32 v4, v1, 2, 2")
    a("v_and_b32 v5, 3, v1")
    a("v_lshlrev_b32 v6, 5, v2")
    a("v_lshl_add_u32 v6, v5, 3, v6")
    a("v_add_u32 v6, 96, v6")
    a("v_lshlrev_b32 v7, 6, v3")
    a("v_lshl_add_u32 v7, v4, 3, v7")
    a("v_sub_u32 v6, v6, v7")
    a("v_add_u32 v20, s43, v6")
    a("v_lshlrev_b32 v6, 8, v2")
    a("v_lshl_add_u32 v6, v5, 6, v6")
    a("v_add3_u32 v6, v6, v7, 64")
    a("v_add_u32 v21, s52, v6")
    a("v_lshlrev_b32 v22, 1, v1")
    a("v_add_u32 v22, s52, v22")
    a("s_waitcnt lgkmcnt(0)")
    a("s_barrier")
    if stamps: stamp(a, 1); a("s_waitcnt lgkmcnt(0)")
    lg = LgkmTracker(a)
    reads = []
    def rG(s):
        d = (s + 3) * 4
        return [(None, f"ds_read_b64_tr_b16 a[{d}:{d+1}], v21 offset:{(s+3)*128}"),
                (("G", s), f"ds_read_b64_tr_b16 a[{d+2}:{d+3}], v21 offset:{(s+3)*128+32}")]
    def rF(dl):
        d = 128 + dl * 4
        return [(None, f"ds_read_b64_tr_b16 a[{d}:{d+1}], v20 offset:{dl*128+32}"),
                (("F", dl), f"ds_read_b64_tr_b16 a[{d+2}:{d+3}], v20 offset:{dl*128}")]
    for dl in range(4):
        reads += rF(dl)
        for n in range(8): reads += rG(4 * n - dl)
    for dl in range(4, 32): reads += rF(dl)
    for gm in range(32):
        reads.append((("U", gm), f"ds_read_u16 v{64+gm}, v22 offset:{512 + gm*128}"))
    idx = {}
    def issue(k):
        for _ in range(k):
            if reads:
                key, t = reads.pop(0)
                i = lg.issue(t)
                if key: idx[key] = i
    issue(8)
    for dl in range(32):
        for n in range(dl >> 2, 8):
            s = 4 * n - dl
            while ("F", dl) not in idx or ("G", s) not in idx: issue(1)
            lg.need(max(idx[("F", dl)], idx[("G", s)]))
            d = 128 + n * 16
            c = "0" if dl == 0 else f"v[{d}:{d+15}]"
            a(f"v_mfma_f32_32x32x16_bf16 v[{d}:{d+15}], a[{(s+3)*4}:{(s+3)*4+3}], a[{128+dl*4}:{128+dl*4+3}], {c}")
            issue(3 if dl < 4 else 2)
    issue(1000)
    if stamps: stamp(a, 2)
    a("s_waitcnt lgkmcnt(0)")
    a("s_barrier")
    for gm in range(32):
        a(f"v_lshlrev_b32 v{64+gm}, 16, v{64+gm}")
    def Z(gm, e): return 128 + gm * 4 + e
    DP = "row_mask:0xf bank_mask:0xf"
    def level(dst, src, z):
        for gm in range(32):
            if gm == 0:
                a(f"v_add_f32_dpp v{dst(0)}, v{src(0)}, v{z(0)} wave_shr:1 {DP} bound_ctrl:0")
            else:
                a(f"v_add_f32_dpp v{dst(gm)}, v{src(gm-1)}, v{z(gm)} wave_ror:1 {DP}")
        for gm in range(1, 32):
            a(f"v_add_f32_dpp v{dst(gm)}, v{src(gm)}, v{z(gm)} wave_shr:1 {DP}")
    level(lambda g: 24 + g, lambda g: Z(g, 3), lambda g: Z(g, 2))
    level(lambda g: Z(g, 3), lambda g: 24 + g, lambda g: Z(g, 1))
    for gm in range(32):
        a(f"v_fma_f32 v{Z(gm,0)}, v{64+gm}, v9, v{Z(gm,0)}")
    level(lambda g: 24 + g, lambda g: Z(g, 3), lambda g: Z(g, 0))
    a("v_lshlrev_b32 v2, 3, v1")
    a("s_lshl_b32 s60, s32, 1")
    a("v_add_u32 v2, s60, v2")
    for gm in range(0, 32, 2):
        a(f"v_cvt_pk_bf16_f32 v{64+gm//2}, v{24+gm}, v{25+gm}")
    for gm in range(0, 32, 2):
        a(f"ds_write_b16 v2, v{64+gm//2} offset:{gm*512}")
        a(f"ds_write_b16_d16_hi v2, v{64+gm//2} offset:{(gm+1)*512}")
    a("v_lshlrev_b32 v3, 4, v0")
    a("s_lshl_b32 s60, s33, 14")
    a(f"s_add_u32 s60, s60, {A_OFF}")
    a("s_waitcnt lgkmcnt(0)")
    a("s_barrier")
    for i in range(4):
        a(f"ds_read_b128 v[{80+4*i}:{83+4*i}], v3 offset:{i*4096}")
    for i in range(4):
        a(f"s_waitcnt lgkmcnt({3-i})")
        a(f"buffer_store_dwordx4 v[{80+4*i}:{83+4*i}], v3, s[28:31], s60 offen")
        if i < 3: a("s_add_u32 s60, s60, 4096")
    if stamps:
        a("s_waitcnt vmcnt(0)")
        stamp(a, 3)
        stamp_store(a, 28, [(0, 3, 8), (1, 2, 9), (0, 1, 10), (2, 3, 11)])
    a.label(f"{name}_done")
    a("s_endpgm")
    return kernel_desc(name, 512, 96, 256)
```

```python
import sys
from asmlib import *
import gemm1, gemm2, ssm
def build(fn, stamps=False, g1kw={}, g2kw={}, skw={}):
    a = Asm()
    a.lines.append(f"; @launch kernel=ssm_kernel grid=(256,1,1) block=(256,1,1) lds={ssm.SSM_LDS}")
    a.lines.append(f"; @launch kernel=g1_kernel grid=(256,1,1) block=(256,1,1) lds={gemm1.G1_LDS}")
    a.lines.append(f"; @launch kernel=g2_kernel grid=(256,1,1) block=(256,1,1) lds={gemm2.G2_LDS}")
    a.lines.append('.amdgcn_target "amdgcn-amd-amdhsa--gfx950"')
    a.lines.append(".text")
    d = ssm.gen_ssm(a, "ssm_kernel", stamps=stamps, **skw)
    d += gemm1.gen_gemm1(a, "g1_kernel", stamps=stamps, **g1kw)
    d += gemm2.gen_gemm2(a, "g2_kernel", stamps=stamps, **g2kw)
    open(fn, "w").write(a.text() + '.section .rodata,"a"\n' + d)
if __name__ == "__main__":
    build("full_st.s", stamps=True)
    build("full_st_nopf.s", stamps=True, g2kw=dict(prefetch=False))
    build("gated_mix__ssm_conv_s4__swiglu_ffn__prompt.s")
```
